```python
import torch

def _softmax(x, axis=-1):
    return torch.softmax(x, dim=axis)

def _gelu(x):
    return torch.nn.functional.gelu(x, approximate='tanh')

def _silu(x):
    return torch.nn.functional.silu(x)

def _sigmoid(x):
    return torch.sigmoid(x)

def _layernorm(x, axis=-1, eps=1e-05):
    m = x.mean(dim=axis, keepdim=True)
    v = x.var(dim=axis, keepdim=True, unbiased=False)
    return (x - m) / torch.sqrt(v + eps)

def _scatter_add(tgt, idx, src, axis=0):
    return tgt.clone().index_add_(axis, idx, src)

def _segment_sum(src, seg, n):
    out = torch.zeros((n,) + src.shape[1:], dtype=src.dtype)
    return out.index_add_(0, seg, src)

def _pad(x, pw):
    flat = tuple((v for pair in reversed(pw) for v in pair))
    return torch.nn.functional.pad(x, flat)
kernel_name = 'standalone__molecular_angular_painn__graph'

def setup_inputs():

    _w = lambda a: (lambda t: t.to(torch.bfloat16) if t.is_floating_point() else t)(torch.as_tensor(a))
    N, deg, D = (25000, 16, 128)
    n_rbf = max(4, 4)
    E = N * deg
    cutoff = 5.0
    freqs = (torch.arange(1, n_rbf + 1) * torch.pi / cutoff).to(float)
    return {'sv': _w((lambda *s: torch.randn(*s, dtype=torch.bfloat16) * 0.4)(N, 4, D) * 0.3), 'pos': _w((lambda *s: torch.randn(*s, dtype=torch.bfloat16) * 3.2)(N, 3) * 1.2), 'src': _w((lambda lo, hi, *s: torch.randint(lo, hi, s))(0, N, E).to(torch.int64)), 'dst': _w((lambda lo, hi, *s: torch.randint(lo, hi, s))(0, N, E).to(torch.int64)), 'freqs': _w(freqs), 'w_phi1': _w((lambda *s: torch.randn(*s, dtype=torch.bfloat16) * 3.2)(D, D) / D ** 0.5), 'w_phi2': _w((lambda *s: torch.randn(*s, dtype=torch.bfloat16) * 3.2)(D, 3 * D) / D ** 0.5), 'w_rbf': _w((lambda *s: torch.randn(*s, dtype=torch.bfloat16) * 3.2)(n_rbf, 3 * D) / n_rbf ** 0.5)}

def reference(sv, pos, src, dst, freqs, w_phi1, w_phi2, w_rbf):
    N, _, D = sv.shape
    E = src.shape[0]
    PI, cutoff = (3.141592653589793, 5.0)
    s, v = (sv[:, 0, :].clone(), sv[:, 1:, :].clone())
    r_vec = pos[src] - pos[dst]
    d = torch.sqrt((r_vec * r_vec).sum(-1) + 1e-08)
    r_hat = r_vec / d[:, None]
    rbf = torch.sin(d[:, None] * freqs[None, :]) / d[:, None]
    fcut = 0.5 * (torch.cos(PI * d / cutoff) + 1.0)
    fcut = torch.where(d < cutoff, fcut, 0.0 * d)
    Wf = rbf @ w_rbf * fcut[:, None]
    phi = (_silu(s @ w_phi1) @ w_phi2)[src]
    m = phi * Wf
    m_s, m_vv, m_vr = (m[:, :D].clone(), m[:, D:2 * D].clone(), m[:, 2 * D:].clone())
    ds = _segment_sum(m_s, dst, N)
    dv_e = m_vv[:, None, :] * v[src] + m_vr[:, None, :] * r_hat[:, :, None]
    dv = _segment_sum(dv_e.reshape(E, 3 * D), dst, N).reshape(N, 3, D)
    return sv + torch.concatenate([ds[:, None, :], dv], axis=1)
```

```python
import re

TRANS = ('v_exp_f32', 'v_log_f32', 'v_rcp_f32', 'v_rsq_f32', 'v_sqrt_f32', 'v_sin_f32', 'v_cos_f32',
         'v_rcp_iflag_f32')

_reg_re = re.compile(r'\b([vas])(\d+)\b|\b([vas])\[(\d+):(\d+)\]|\b(vcc|exec|m0|scc)\b')


def regs_of(tok):
    out = []
    for m in _reg_re.finditer(tok):
        if m.group(1):
            out.append((m.group(1), int(m.group(2))))
        elif m.group(3):
            out += [(m.group(3), k) for k in range(int(m.group(4)), int(m.group(5)) + 1)]
        else:
            out.append((m.group(6), 0))
    return out


def split_ops(s):
    ops, depth, cur = [], 0, ''
    for ch in s:
        if ch == '[':
            depth += 1
        if ch == ']':
            depth -= 1
        if ch == ',' and depth == 0:
            ops.append(cur.strip())
            cur = ''
        else:
            cur += ch
    if cur.strip():
        ops.append(cur.strip())
    return ops


class Ins:
    pass


def classify(text):
    t = text.split(';')[0].strip()
    parts = t.split(None, 1)
    op = parts[0]
    rest = parts[1] if len(parts) > 1 else ''
    ops = split_ops(rest)
    I = Ins()
    I.op = op
    I.w, I.r = [], []
    I.srcC = []
    I.srcAB = []
    I.kind = 'other'
    I.states = 1
    I.dpp = 'dpp' in op or 'row_' in rest or 'quad_perm' in rest
    base = op.replace('_e32', '').replace('_e64', '').replace('_dpp', '').replace('_sdwa', '')
    I.base = base
    if op == 's_nop':
        I.states = int(ops[0], 0) + 1
        I.kind = 'nop'
    elif op.startswith('v_mfma'):
        I.kind = 'mfma'
        I.w = regs_of(ops[0])
        I.srcAB = regs_of(ops[1]) + regs_of(ops[2])
        I.srcC = regs_of(ops[3])
        I.r = I.srcAB + I.srcC
        I.passes = 8 if '32x32' in op else 4
    elif op.startswith('v_cmp'):
        I.kind = 'valu'
        I.w = regs_of(ops[0])
        for o in ops[1:]:
            I.r += regs_of(o)
    elif base in ('v_readlane_b32', 'v_readfirstlane_b32'):
        I.kind = 'valu'
        I.w = regs_of(ops[0])
        I.r = regs_of(ops[1])
        I.lanesel = regs_of(ops[2]) if len(ops) > 2 else []
        I.r += I.lanesel
    elif base in ('v_add_co_u32', 'v_sub_co_u32', 'v_addc_co_u32', 'v_subb_co_u32', 'v_subrev_co_u32'):
        I.kind = 'valu'
        I.w = regs_of(ops[0]) + regs_of(ops[1])
        for o in ops[2:]:
            I.r += regs_of(o)
    elif op.startswith('v_'):
        I.kind = 'trans' if base in TRANS else 'valu'
        I.w = regs_of(ops[0])
        for o in ops[1:]:
            I.r += regs_of(o)
        if base in ('v_fmac_f32', 'v_writelane_b32', 'v_pk_fmac_f16') or I.dpp or 'sdwa' in op:
            I.r += I.w
        if base == 'v_writelane_b32':
            I.lanesel = regs_of(ops[2])
    elif op.startswith('ds_'):
        I.kind = 'lds'
        if op.startswith('ds_read') or '_rtn_' in op or 'permute' in op or 'swizzle' in op:
            I.w = regs_of(ops[0])
            for o in ops[1:]:
                I.r += regs_of(o)
        else:
            for o in ops:
                I.r += regs_of(o)
    elif op.startswith('buffer_') or op.startswith('global_'):
        I.kind = 'vmem'
        islds = bool(re.search(r'\blds\b', rest)) or 'load_lds' in op
        I.islds = islds
        if 'load' in op and not islds:
            I.w = regs_of(ops[0])
            for o in ops[1:]:
                I.r += regs_of(o)
            if 'd16' in op:
                I.r += I.w
        elif 'atomic' in op and 'sc0' in rest:
            I.w = regs_of(ops[0])
            for o in ops:
                I.r += regs_of(o)
        else:
            for o in ops:
                I.r += regs_of(o)
        if islds:
            I.r.append(('m0', 0))
        I.widestore = ('store' in op and ('x3' in op or 'x4' in op))
        if I.widestore:
            I.storedata = regs_of(ops[0]) if op.startswith('buffer_') else regs_of(ops[1])
    elif op.startswith('s_'):
        I.kind = 'salu'
        if op.startswith('s_cmp') or op.startswith('s_cbranch') or op in ('s_branch', 's_waitcnt', 's_barrier', 's_endpgm', 's_setprio', 's_sleep'):
            for o in ops:
                I.r += regs_of(o)
        else:
            I.w = regs_of(ops[0])
            for o in ops[1:]:
                I.r += regs_of(o)
            if 'saveexec' in op:
                I.w.append(('exec', 0))
    if base in ('v_cndmask_b32',) and len(ops) == 3:
        I.r.append(('vcc', 0))
    return I


def is_sreg(r):
    return r[0] in ('s', 'vcc')


class Asm:
    def __init__(self):
        self.lines = []
        self.hist = []
        self.pos = 0
        self.nops_added = 0

    def raw(self, text):
        self.lines.append(text)

    def c(self, text):
        self.lines.append('    ; ' + text)

    def _need(self, I):
        need = self.pos
        rs, ws = set(I.r), set(I.w)
        for (P, ppos) in reversed(self.hist):
            dist_base = ppos + 1
            if self.pos - dist_base > 24:
                break
            pw = set(P.w)
            req = 0
            if P.kind in ('valu', 'trans'):
                vw = {r for r in pw if r[0] in ('v', 'a')}
                sw = {r for r in pw if is_sreg(r)}
                if I.kind == 'mfma' and vw & rs:
                    req = max(req, 2)
                if P.kind == 'trans' and I.kind in ('valu', 'mfma') and vw & rs:
                    req = max(req, 1)
                if P.kind == 'trans' and I.kind in ('lds', 'vmem') and vw & rs:
                    req = max(req, 1)
                if I.kind in ('valu', 'trans') and sw & rs:
                    req = max(req, 2)
                    if sw & set(getattr(I, 'lanesel', [])):
                        req = max(req, 4)
                if I.kind == 'vmem' and sw & rs:
                    req = max(req, 5)
                if I.base in ('v_readlane_b32', 'v_readfirstlane_b32') and vw & rs:
                    req = max(req, 1)
                if I.kind in ('valu', 'trans') and I.dpp and vw & rs:
                    req = max(req, 2)
                if I.base.startswith('v_permlane') and vw & rs:
                    req = max(req, 2)
                if I.kind == 'salu' and sw & rs:
                    req = max(req, 1)
            if P.kind == 'mfma':
                big = {4: 8, 8: 12}[P.passes]
                if I.kind == 'mfma':
                    if pw & set(I.srcAB):
                        req = max(req, big)
                    if pw & set(I.srcC):
                        if set(I.srcC) == pw and I.passes == P.passes:
                            req = max(req, 0)
                        else:
                            req = max(req, {4: 6, 8: 10}[P.passes])
                    elif pw & ws:
                        req = max(req, big)
                elif I.kind in ('valu', 'trans', 'lds', 'vmem'):
                    if pw & (rs | ws):
                        req = max(req, big)
                    if I.kind in ('valu', 'trans', 'lds', 'vmem') and set(P.srcC) & ws:
                        req = max(req, {4: 3, 8: 7}[P.passes])
            if P.kind == 'salu' and ('m0', 0) in pw and ('m0', 0) in rs:
                req = max(req, 1)
            if P.kind == 'vmem' and getattr(P, 'widestore', False):
                if set(P.storedata) & ws:
                    req = max(req, 2)
            need = max(need, dist_base + req)
        return need

    def i(self, text):
        I = classify(text)
        if I.kind != 'nop':
            need = self._need(I)
            if need > self.pos:
                k = need - self.pos
                self._nop(k)
        self.lines.append('    ' + text)
        self.hist.append((I, self.pos + I.states - 1))
        self.pos += I.states
        if len(self.hist) > 64:
            self.hist = self.hist[-64:]
        if I.op.startswith('s_cbranch') or I.op == 's_branch':
            pass

    def _nop(self, k):
        self.nops_added += k
        while k > 0:
            n = min(k, 16)
            self.lines.append('    s_nop %d' % (n - 1))
            self.pos += n
            k -= n

    def flush(self):
        need = self.pos
        for (P, ppos) in reversed(self.hist):
            db = ppos + 1
            if self.pos - db > 24:
                break
            req = 0
            if P.kind in ('valu', 'trans'):
                req = 2
                if any(is_sreg(r) for r in P.w):
                    req = 5
            if P.kind == 'mfma':
                req = {4: 8, 8: 12}[P.passes]
            if P.kind == 'salu' and ('m0', 0) in P.w:
                req = 1
            if P.kind == 'vmem' and getattr(P, 'widestore', False):
                req = 2
            need = max(need, db + req)
        if need > self.pos:
            self._nop(need - self.pos)
        self.hist = []

    def label(self, name):
        self.flush()
        self.lines.append(name + ':')

    def br(self, text):
        self.flush()
        self.lines.append('    ' + text)
        self.pos += 1

    def text(self):
        return '\n'.join(self.lines) + '\n'
```

```python
from asmgen import Asm

N = 25000
E = 400000
NPB = 98
NB2 = 256
K1T = 448
EPW = K1T * 4
NB1 = (E + EPW - 1) // EPW
CELLB = 64
CELLS_OFF = 0
CELLS_BYTES = NB1 * NB2 * CELLB
OVF_OFF = 4 << 20
OVF_STRIDE = 8192
WF_OFF = 6 << 20
WRF_OFF = WF_OFF + 128 * 1024
SCR_OFF = 8 << 20
WS_USED = 12 << 20
NPREP = 24
K1_GRID = NB1 + NPREP
CELL_CAP = 14
L1_CNT = 148 * 1024
L1_OVF = L1_CNT + 1024
K1_LDS = L1_OVF + 16
MAGIC98 = (1 << 32) // NPB + 1


def srd(A, d, base, nbytes):
    A.i(f's_mov_b32 s{d}, s{base}')
    A.i(f's_and_b32 s{d+1}, s{base+1}, 0xffff')
    A.i(f's_mov_b32 s{d+2}, {nbytes}')
    A.i(f's_mov_b32 s{d+3}, 0x00020000')


def gen_k1(A):
    for x in range(N):
        assert (x * MAGIC98) >> 32 == x // NPB
    A.raw('.p2align 8')
    A.raw('k1_kernel:')
    A.i(f's_cmp_ge_u32 s2, {K1_GRID}')
    A.br('s_cbranch_scc1 K1_END')
    A.i('s_load_dwordx4 s[4:7], s[0:1], 8')
    A.i('s_load_dwordx2 s[8:9], s[0:1], 24')
    A.i('s_load_dwordx2 s[10:11], s[0:1], 80')
    A.i('s_load_dwordx4 s[40:43], s[0:1], 40')
    A.i('s_load_dwordx2 s[44:45], s[0:1], 56')
    A.i('v_lshrrev_b32 v1, 6, v0')
    A.i('v_readfirstlane_b32 s3, v1')
    A.i('v_and_b32 v2, 63, v0')
    A.i('s_waitcnt lgkmcnt(0)')
    srd(A, 12, 4, N * 6)
    srd(A, 16, 6, E * 4)
    srd(A, 20, 8, E * 4)
    srd(A, 24, 10, WS_USED)
    A.i(f's_cmp_ge_u32 s2, {NB1}')
    A.br('s_cbranch_scc1 K1_PREP')
    A.i(f's_mul_i32 s28, s2, {EPW * 4}')
    A.i('v_lshlrev_b32 v3, 4, v0')
    A.i('v_add_u32 v3, s28, v3')
    A.i('buffer_load_dwordx4 v[4:7], v3, s[16:19], 0 offen')
    A.i('buffer_load_dwordx4 v[8:11], v3, s[20:23], 0 offen')
    A.i('v_lshlrev_b32 v12, 4, v2')
    A.i('s_lshl_b32 s29, s3, 12')
    for i in range(6):
        if i == 5:
            A.i('s_cmp_ge_u32 s3, 2')
            A.br('s_cbranch_scc1 K1_DMA_DONE')
        A.i('s_mov_b32 m0, s29')
        for j in range(4):
            A.i(f'buffer_load_dwordx4 v12, s[12:15], s29 offen offset:{j*1024} lds')
        A.i(f's_add_u32 s29, s29, {7*4096}')
    A.label('K1_DMA_DONE')
    A.i('v_mov_b32 v13, 0')
    A.i('v_lshlrev_b32 v14, 2, v0')
    A.i('v_cmp_gt_u32 vcc, 260, v0')
    A.i('s_and_saveexec_b64 s[30:31], vcc')
    A.i(f'ds_write_b32 v14, v13 offset:{0}' if False else f'v_add_u32 v15, {L1_CNT}, v14')
    A.i('ds_write_b32 v15, v13')
    A.i('s_mov_b64 exec, s[30:31]')
    A.i('s_waitcnt vmcnt(0) lgkmcnt(0)')
    A.i('s_barrier')
    for k in range(8):
        A.i(f'v_mul_u32_u24 v{16+k}, 6, v{4+k}')
        A.i(f'v_and_b32 v{16+k}, -4, v{16+k}')
    for k in range(8):
        A.i(f'ds_read2_b32 v[{24+2*k}:{25+2*k}], v{16+k} offset0:0 offset1:1')
    A.i(f's_mov_b32 s32, {E*4}')
    A.i('v_cmp_gt_u32 s[34:35], s32, v3')
    A.i(f's_mov_b32 s33, {MAGIC98}')
    A.i('s_mov_b32 s36, 0x41c88000')
    A.i('s_mov_b32 s37, 0xffff0000')
    for k in range(8):
        A.i(f'v_and_b32 v{16+k}, 1, v{4+k}')
        A.i(f'v_lshlrev_b32 v{16+k}, 4, v{16+k}')
    A.i('s_waitcnt lgkmcnt(0)')
    for k in range(8):
        lo, hi = 24 + 2 * k, 25 + 2 * k
        A.i(f'v_alignbit_b32 v{lo}, v{hi}, v{lo}, v{16+k}')
        A.i(f'v_lshrrev_b32 v{hi}, v{16+k}, v{hi}')
    for e in range(4):
        sl, sh = 24 + 2 * e, 25 + 2 * e
        dl, dh = 32 + 2 * e, 33 + 2 * e
        A.i(f'v_lshlrev_b32 v40, 16, v{sl}')
        A.i(f'v_lshlrev_b32 v41, 16, v{dl}')
        A.i(f'v_sub_f32 v40, v40, v41')
        A.i(f'v_and_b32 v41, s37, v{sl}')
        A.i(f'v_and_b32 v42, s37, v{dl}')
        A.i(f'v_sub_f32 v41, v41, v42')
        A.i(f'v_lshlrev_b32 v42, 16, v{sh}')
        A.i(f'v_lshlrev_b32 v43, 16, v{dh}')
        A.i(f'v_sub_f32 v42, v42, v43')
        A.i(f'v_mul_f32 v40, v40, v40')
        A.i(f'v_fmac_f32 v40, v41, v41')
        A.i(f'v_fmac_f32 v40, v42, v42')
        A.i(f'v_cmp_nle_f32 s[{46+2*e}:{47+2*e}], s36, v40')
        A.i(f'v_mul_hi_u32 v{44+e}, v{8+e}, s33')
        A.i(f'v_lshl_or_b32 v{48+e}, v{8+e}, 16, v{4+e}')
    A.i('v_mov_b32 v13, 1')
    A.i('s_mov_b64 s[30:31], exec')
    for e in range(4):
        A.i(f's_and_b64 s[{46+2*e}:{47+2*e}], s[{46+2*e}:{47+2*e}], s[34:35]')
        A.i(f'v_lshlrev_b32 v{52+e}, 2, v{44+e}')
        A.i(f'v_add_u32 v{52+e}, {L1_CNT}, v{52+e}')
        A.i(f'v_mov_b32 v{56+e}, 0')
    for e in range(4):
        A.i(f's_mov_b64 exec, s[{46+2*e}:{47+2*e}]')
        A.i(f'ds_add_rtn_u32 v{56+e}, v{52+e}, v13')
    A.i('s_mov_b64 exec, s[30:31]')
    A.i('s_waitcnt lgkmcnt(0)')
    A.i('s_barrier')
    A.i('s_mov_b64 s[54:55], 0')
    for e in range(4):
        A.i(f'v_cmp_le_u32 vcc, 7, v{56+e}')
        A.i(f'v_addc_co_u32 v{52+e}, vcc, 1, v{56+e}, vcc')
        A.i(f'v_lshlrev_b32 v{52+e}, 2, v{52+e}')
        A.i(f'v_lshl_add_u32 v{52+e}, v{44+e}, 6, v{52+e}')
        A.i(f'v_cmp_gt_u32 vcc, {CELL_CAP}, v{56+e}')
        A.i(f's_andn2_b64 s[{56+2*e}:{57+2*e}], s[{46+2*e}:{47+2*e}], vcc')
        A.i(f's_or_b64 s[54:55], s[54:55], s[{56+2*e}:{57+2*e}]')
        A.i(f's_and_b64 exec, s[{46+2*e}:{47+2*e}], vcc')
        A.i(f'ds_write_b32 v{52+e}, v{48+e}')
        A.i('s_mov_b64 exec, s[30:31]')
    A.i('s_cmp_eq_u64 s[54:55], 0')
    A.br('s_cbranch_scc1 K1_NOOVF')
    A.i(f'v_mov_b32 v40, {L1_OVF}')
    A.i(f's_mul_i32 s28, s2, {OVF_STRIDE}')
    A.i(f's_add_u32 s28, s28, {OVF_OFF + 16}')
    for e in range(4):
        A.i(f's_mov_b64 exec, s[{56+2*e}:{57+2*e}]')
        A.br(f's_cbranch_execz K1_OV{e}')
        A.i(f'ds_add_rtn_u32 v41, v40, v13')
        A.i('s_waitcnt lgkmcnt(0)')
        A.i('v_lshlrev_b32 v41, 2, v41')
        A.i(f'buffer_store_dword v{48+e}, v41, s[24:27], s28 offen')
        A.label(f'K1_OV{e}')
    A.i('s_mov_b64 exec, s[30:31]')
    A.label('K1_NOOVF')
    A.i('s_waitcnt lgkmcnt(0)')
    A.i('s_barrier')
    A.i(f's_mul_i32 s28, s2, {NB2 * CELLB}')
    for r in range(3):
        p = 40 + r
        A.i(f'v_add_u32 v{p}, {r*K1T}, v0')
        A.i(f'v_lshlrev_b32 v{44+r}, 4, v{p}')
        A.i(f'v_and_b32 v{48+r}, -4, v{p}')
        A.i(f'v_add_u32 v{48+r}, {L1_CNT}, v{48+r}')
    A.i('v_cmp_gt_u32 vcc, 1024, v42')
    for r in range(3):
        if r == 2:
            A.i('s_and_b64 exec, exec, vcc')
            A.br('s_cbranch_execz K1_CP2')
        A.i(f'ds_read_b128 v[{16+4*r}:{19+4*r}], v{44+r}')
        A.i(f'ds_read_b32 v{52+r}, v{48+r}')
    A.label('K1_CP2')
    A.i('s_mov_b64 exec, s[30:31]')
    A.i(f'v_mov_b32 v56, {L1_OVF}')
    A.i('ds_read_b32 v57, v56')
    A.i('v_and_b32 v55, 1, v0')
    A.i('v_cmp_eq_u32 s[34:35], 0, v55')
    A.i('s_waitcnt lgkmcnt(0)')
    for r in range(3):
        A.i(f'v_cndmask_b32 v{16+4*r}, v{16+4*r}, v{52+r}, s[34:35]')
    for r in range(3):
        if r == 2:
            A.i('s_and_b64 exec, exec, vcc')
            A.br('s_cbranch_execz K1_CP3')
        A.i(f'buffer_store_dwordx4 v[{16+4*r}:{19+4*r}], v{44+r}, s[24:27], s28 offen')
    A.label('K1_CP3')
    A.i('s_mov_b64 exec, s[30:31]')
    A.i('v_cmp_eq_u32 vcc, 0, v0')
    A.i('s_and_b64 exec, exec, vcc')
    A.br('s_cbranch_execz K1_END')
    A.i(f's_mul_i32 s28, s2, {OVF_STRIDE}')
    A.i(f's_add_u32 s28, s28, {OVF_OFF}')
    A.i('buffer_store_dword v57, v0, s[24:27], s28 offen')
    A.i('s_endpgm')
    A.label('K1_PREP')
    A.i(f's_sub_u32 s28, s2, {NB1}')
    A.i('s_mul_i32 s28, s28, 7')
    A.i('s_add_u32 s28, s28, s3')
    A.i('s_and_b32 s29, s28, 7')
    A.i('s_lshr_b32 s30, s28, 3')
    A.i('v_and_b32 v3, 15, v2')
    A.i('v_lshrrev_b32 v4, 4, v2')
    A.i('s_cmp_ge_u32 s30, 16')
    A.br('s_cbranch_scc1 K1_PREP_RBF')
    A.i('s_and_b32 s31, s30, 3')
    A.i('s_mov_b32 s34, 98304')
    A.i('s_movk_i32 s36, 768')
    A.i('s_cmp_lt_u32 s30, 4')
    A.i('s_cselect_b32 s32, s40, s42')
    A.i('s_cselect_b32 s33, s41, s43')
    A.i('s_cselect_b32 s34, 32768, s34')
    A.i('s_cselect_b32 s36, 256, s36')
    A.i('s_and_b32 s33, s33, 0xffff')
    A.i('s_mov_b32 s35, 0x00020000')
    A.i('s_lshr_b32 s37, s30, 2')
    A.i('s_max_u32 s37, s37, 1')
    A.i('s_sub_u32 s37, s37, 1')
    A.i('s_lshl_b32 s37, s37, 8')
    A.i('s_lshl_b32 s38, s29, 5')
    A.i('s_add_u32 s37, s37, s38')
    A.i('s_lshl_b32 s38, s31, 5')
    A.i('s_mul_i32 s38, s38, s36')
    A.i('s_add_u32 s37, s37, s38')
    A.i('v_lshlrev_b32 v5, 3, v4')
    A.i('v_mul_lo_u32 v5, v5, s36')
    A.i('v_lshl_add_u32 v5, v3, 1, v5')
    for j in range(8):
        A.i(f'buffer_load_ushort v{16 + j}, v5, s[32:35], s37 offen')
        if j < 7:
            A.i('s_add_u32 s37, s37, s36')
    A.i('s_lshl_b32 s38, s28, 10')
    A.i(f's_add_u32 s38, s38, {WF_OFF}')
    A.i('v_lshlrev_b32 v6, 4, v2')
    A.i('s_waitcnt vmcnt(0)')
    for j in range(4):
        A.i(f'v_lshl_or_b32 v{8+j}, v{17+2*j}, 16, v{16+2*j}')
    A.i('buffer_store_dwordx4 v[8:11], v6, s[24:27], s38 offen')
    A.i('s_endpgm')
    A.label('K1_PREP_RBF')
    srd(A, 32, 44, 4 * 768)
    A.i('s_sub_u32 s30, s30, 16')
    A.i('s_min_u32 s31, s30, 2')
    A.i('s_max_u32 s36, s30, 1')
    A.i('s_sub_u32 s36, s36, 1')
    A.i('s_lshl_b32 s37, s31, 8')
    A.i('s_lshl_b32 s38, s29, 5')
    A.i('s_add_u32 s37, s37, s38')
    A.i('v_lshlrev_b32 v5, 1, v3')
    for j in range(4):
        A.i(f'buffer_load_ushort v{16+j}, v5, s[32:35], s37 offen offset:{768*j}')
    A.i('v_cmp_eq_u32 vcc, s36, v4')
    A.i('s_sub_u32 s38, s28, 128')
    A.i('s_lshl_b32 s38, s38, 9')
    A.i(f's_add_u32 s38, s38, {WRF_OFF}')
    A.i('v_lshlrev_b32 v6, 3, v2')
    A.i('s_waitcnt vmcnt(0)')
    A.i('v_lshl_or_b32 v8, v17, 16, v16')
    A.i('v_lshl_or_b32 v9, v19, 16, v18')
    A.i('v_cndmask_b32 v8, 0, v8, vcc')
    A.i('v_cndmask_b32 v9, 0, v9, vcc')
    A.i('buffer_store_dwordx2 v[8:9], v6, s[24:27], s38 offen')
    A.label('K1_END')
    A.i('s_endpgm')


def kd(name, vgpr, sgpr, accum=None):
    if accum is None:
        accum = (vgpr + 3) // 4 * 4
    return f'''.p2align 6
.amdhsa_kernel {name}
  .amdhsa_next_free_vgpr {vgpr}
  .amdhsa_next_free_sgpr {sgpr}
  .amdhsa_accum_offset {accum}
  .amdhsa_group_segment_fixed_size 0
  .amdhsa_kernarg_size 88
  .amdhsa_user_sgpr_count 2
  .amdhsa_user_sgpr_kernarg_segment_ptr 1
  .amdhsa_system_sgpr_workgroup_id_x 1
  .amdhsa_float_denorm_mode_32 3
  .amdhsa_float_denorm_mode_16_64 3
.end_amdhsa_kernel
'''


if __name__ == '__main__':
    A = Asm()
    A.raw(f'; @launch kernel=k1_kernel grid=({K1_GRID},1,1) block=({K1T},1,1) lds={K1_LDS}')
    A.raw('.amdgcn_target "amdgcn-amd-amdhsa--gfx950"')
    A.raw('.text')
    gen_k1(A)
    A.raw('.section .rodata,"a"')
    A.raw(kd('k1_kernel', 64, 72))
    open('k1.s', 'w').write(A.text())
```

```python
from asmgen import Asm
from k1 import *

K2T = 512
CAP = 512
RING = 0
SLOT = 32768
HB = 4 * SLOT
PT = HB + 8192
KT = PT + (CAP + 32) * 32
LUT = KT + (CAP + 32) * 4
CNT = LUT + 81 * 16
PL = CNT + 512
FLG = PL + 512
K2_LDS = FLG + 32
assert K2_LDS <= 163840
OOB = 0x40000000

sWV = 3
SV, OUT, WS, POS, RES = 8, 12, 16, 20, 24
sBASE, sNN, sTOT = 28, 29, 30
sA, sB, sW0, sEND = 32, 33, 34, 35
CELLSRD = 36
dOFF, dNN, dW0, dFL, dA = 40, 44, 48, 52, 56
sM0B = 80
sF = 84
sHI = 88
sOOB = 89
sNL2E = 90
sPASS = 91
sSCR = 92
sALL = 93
DBG = 96

vLANE, vN, vQ = 1, 2, 3
vSLO, vSHI, vHR, vHW, vTLO, vTHI, vPAY = 4, 8, 12, 16, 17, 18, 19
vDMA, vPE, vPO, vRO, vPLK, v8Q, vKTA, vU, vT = 20, 24, 25, 26, 27, 28, 29, 30, 31
RESID = 32
FR = 64
PHI = 96
WF = 120
VV = 136
PAYF = 148
SEL = 152
ACC = 156
TMP = 172
NV = 176
aW1, aW2, aWR = 0, 16, 64
NA = 74


def r4(b):
    return f'v[{b}:{b+3}]'


def r2(b):
    return f'v[{b}:{b+1}]'


def bf16r2(A, a, b, t):
    A.i(f'v_cvt_pk_bf16_f32 v{t}, v{a}, v{b}')
    A.i(f'v_lshlrev_b32 v{a}, 16, v{t}')
    A.i(f'v_and_b32 v{b}, s{sHI}, v{t}')


def bf16r1(A, a):
    A.i(f'v_cvt_pk_bf16_f32 v{a}, v{a}, v{a}')
    A.i(f'v_lshlrev_b32 v{a}, 16, v{a}')


_lbl = [0]


def L(p):
    _lbl[0] += 1
    return f'{p}_{_lbl[0]}'


def gen_desc(A, ki):
    cont, done, null = L('GD_CONT'), L('GD_DONE'), L('GD_NULL')
    A.i(f's_mov_b32 s65, 4')
    A.i(f's_cmp_lt_u32 s{sW0}, s{sEND}')
    A.br(f's_cbranch_scc1 {cont}')
    A.i(f's_mov_b32 s{sA}, s{sB}')
    A.i(f's_cmp_ge_u32 s{sA}, s{sNN}')
    A.br(f's_cbranch_scc1 {null}')
    A.i(f's_add_u32 s66, s{sW0}, 32')
    A.i(f'v_cmp_ge_u32 s[60:61], s66, v{vPE}')
    A.i(f'v_cmp_ge_u32 s[62:63], s66, v{vPO}')
    A.i(f's_bcnt1_i32_b64 s66, s[60:61]')
    A.i(f's_bcnt1_i32_b64 s67, s[62:63]')
    A.i(f's_add_u32 s66, s66, s67')
    A.i(f's_sub_u32 s66, s66, 1')
    A.i(f's_add_u32 s67, s{sA}, 16')
    A.i(f's_min_u32 s66, s66, s67')
    A.i(f's_min_u32 s66, s66, s{sNN}')
    A.i(f's_add_u32 s67, s{sA}, 1')
    A.i(f's_max_u32 s{sB}, s66, s67')
    A.i(f's_lshr_b32 s66, s{sB}, 1')
    A.i(f'v_readlane_b32 s67, v{vPE}, s66')
    A.i(f'v_readlane_b32 s68, v{vPO}, s66')
    A.i(f's_bitcmp1_b32 s{sB}, 0')
    A.i(f's_cselect_b32 s{sEND}, s68, s67')
    A.i(f's_mov_b32 s65, 5')
    A.label(cont)
    A.i(f's_sub_u32 s66, s{sEND}, s{sW0}')
    A.i(f's_min_u32 s64, s66, 32')
    A.i(f's_cmp_le_u32 s66, 32')
    A.i(f's_cselect_b32 s67, 2, 0')
    A.i(f's_or_b32 s{dFL+ki}, s65, s67')
    A.i(f's_mov_b32 s{dW0+ki}, s{sW0}')
    A.i(f's_add_u32 s{sW0}, s{sW0}, s64')
    A.i(f's_mov_b32 s{dA+ki}, s{sA}')
    A.i(f's_sub_u32 s{dNN+ki}, s{sB}, s{sA}')
    A.i(f's_add_u32 s66, s{sBASE}, s{sA}')
    A.i(f's_lshl_b32 s{dOFF+ki}, s66, 10')
    A.br(f's_branch {done}')
    A.label(null)
    A.i(f's_mov_b32 s64, 0')
    A.i(f's_mov_b32 s{dFL+ki}, 0')
    A.i(f's_mov_b32 s{dW0+ki}, 0')
    A.i(f's_mov_b32 s{dA+ki}, 0')
    A.i(f's_mov_b32 s{dNN+ki}, 0')
    A.i(f's_mov_b32 s{dOFF+ki}, 0')
    A.label(done)


def issue_tile(A, ki, lgk_after_key=0):
    A.i(f's_lshl_b32 s66, s{dW0+ki}, 2')
    A.i(f'v_add_u32 v{TMP}, s66, v{vKTA}')
    A.i(f'ds_read_b32 v{TMP}, v{TMP}')
    A.i(f's_bitcmp1_b32 s{dFL+ki}, 0')
    A.i(f's_cselect_b32 s66, s{dNN+ki}, 0')
    A.i(f'v_cmp_gt_u32 vcc, s66, v{vN}')
    A.i(f'v_mov_b32 v{TMP+1}, s{sOOB}')
    A.i(f'v_cndmask_b32 v{TMP+1}, v{TMP+1}, v{vRO}, vcc')
    A.i(f'v_cmp_gt_u32 vcc, s64, v{vU}')
    A.i('s_waitcnt lgkmcnt(0)')
    A.i(f'v_and_b32 v{TMP}, 0xffff, v{TMP}')
    A.i(f'v_lshlrev_b32 v{TMP}, 10, v{TMP}')
    A.i(f'v_mov_b32 v{TMP+2}, s{sOOB}')
    A.i(f'v_cndmask_b32 v{TMP}, v{TMP+2}, v{TMP}, vcc')
    for i in range(4):
        A.i(f'v_readlane_b32 s{72+i}, v{TMP}, {i}')
    for i in range(4):
        A.i(f's_add_u32 m0, s{sM0B}, {RING + ki * SLOT + i * 1024}')
        A.i(f'buffer_load_dwordx4 v{vDMA+i}, s[{SV}:{SV+3}], s{72+i} offen lds')
    for c in range(4):
        A.i(f'buffer_load_dwordx2 {r2(RESID + 8*ki + 2*c)}, v{TMP+1}, s[{RES}:{RES+3}], s{dOFF+ki} offen offset:{c*256}')


def gen_k2(A, dbg=None):
    A.raw('.p2align 8')
    A.raw('k2_kernel:')
    A.i(f's_cmp_ge_u32 s2, {NB2}')
    A.br('s_cbranch_scc1 K2_END')
    A.i('s_load_dwordx4 s[60:63], s[0:1], 0')
    A.i('s_load_dwordx2 s[64:65], s[0:1], 32')
    A.i('s_load_dwordx4 s[68:71], s[0:1], 64')
    A.i('s_load_dwordx2 s[72:73], s[0:1], 80')
    A.i('v_lshrrev_b32 v1, 6, v0')
    A.i(f'v_readfirstlane_b32 s{sWV}, v1')
    A.i(f'v_and_b32 v{vLANE}, 63, v0')
    A.i(f'v_and_b32 v{vN}, 15, v0')
    A.i(f'v_bfe_u32 v{vQ}, v0, 4, 2')
    A.i('v_and_b32 v64, 255, v0')
    A.i('v_lshlrev_b32 v64, 14, v64')
    A.i('v_lshrrev_b32 v65, 8, v0')
    A.i('v_lshl_add_u32 v72, v65, 5, v64')
    A.i('s_lshl_b32 s74, s2, 6')
    A.i('s_waitcnt lgkmcnt(0)')
    srd(A, CELLSRD, 72, CELLS_BYTES)
    A.i(f'buffer_load_dwordx4 v[64:67], v72, s[{CELLSRD}:{CELLSRD+3}], s74 offen')
    A.i(f'buffer_load_dwordx4 v[68:71], v72, s[{CELLSRD}:{CELLSRD+3}], s74 offen offset:16')
    A.i('s_load_dwordx2 s[76:77], s[64:65], 0')
    srd(A, SV, 60, N * 1024)
    srd(A, RES, 60, N * 1024)
    srd(A, POS, 62, N * 6)
    srd(A, OUT, 68, N * 1024)
    srd(A, WS, 72, WS_USED)
    srd(A, DBG, 70, 256)
    A.i(f'v_lshlrev_b32 v73, 4, v{vLANE}')
    A.i(f's_lshl_b32 s74, s{sWV}, 10')
    A.i(f's_add_u32 s74, s74, {WF_OFF}')
    for r in range(16):
        A.i(f'buffer_load_dwordx4 a[{4*r}:{4*r+3}], v73, s[{WS}:{WS+3}], s74 offen')
        if r < 15:
            A.i('s_add_u32 s74, s74, 8192')
    A.i(f'v_lshlrev_b32 v74, 3, v{vLANE}')
    A.i(f's_lshl_b32 s74, s{sWV}, 9')
    A.i(f's_add_u32 s74, s74, {WRF_OFF}')
    for t in range(5):
        A.i(f'buffer_load_dwordx2 a[{aWR+2*t}:{aWR+2*t+1}], v74, s[{WS}:{WS+3}], s74 offen')
        if t < 4:
            A.i('s_add_u32 s74, s74, 4096')
    NW = 21
    A.i(f's_mul_i32 s{sBASE}, s2, {NPB}')
    A.i(f's_sub_u32 s{sNN}, {N}, s{sBASE}')
    A.i(f's_min_u32 s{sNN}, s{sNN}, {NPB}')
    A.i(f's_lshl_b32 s{sM0B}, s{sWV}, 12')
    A.i(f's_mov_b32 s{sHI}, 0xffff0000')
    A.i(f's_mov_b32 s{sOOB}, {OOB}')
    A.i(f's_mov_b32 s{sNL2E}, 0xbfb8aa3b')
    A.i(f's_mov_b32 s{sPASS}, 0')
    A.i(f's_lshl_b32 s74, s{sBASE}, 10')
    A.i('v_lshlrev_b32 v75, 7, v0')
    A.i(f'buffer_load_dword v{ACC+14}, v75, s[{SV}:{SV+3}], s74 offen')
    A.i(f'v_add_u32 v75, 0x10000, v75')
    A.i(f'v_cmp_gt_u32 vcc, {NPB*1024}, v75')
    A.i(f'v_mov_b32 v77, s{sOOB}')
    A.i('v_cndmask_b32 v75, v77, v75, vcc')
    A.i(f'buffer_load_dword v{ACC+15}, v75, s[{SV}:{SV+3}], s74 offen')
    NW += 2
    A.i(f'v_lshrrev_b32 v80, 2, v{vN}')
    A.i(f'v_and_b32 v81, 3, v{vN}')
    A.i('v_lshl_add_u32 v80, v80, 3, v81')
    A.i(f'v_xor_b32 v81, v{vQ}, v{vN}')
    for ks in range(4):
        A.i(f'v_xor_b32 v82, {4*ks}, v81')
        A.i('v_lshlrev_b32 v82, 4, v82')
        A.i(f'v_lshl_add_u32 v{vSLO+ks}, v80, 10, v82')
        A.i(f'v_add_u32 v{vSHI+ks}, 0x10000, v{vSLO+ks}')
        A.i(f'v_lshl_add_u32 v{vHR+ks}, v80, 8, v82')
        A.i(f'v_add_u32 v{vHR+ks}, {HB}, v{vHR+ks}')
    A.i(f'v_lshrrev_b32 v82, 1, v{vQ}')
    A.i(f's_lshl_b32 s74, s{sWV}, 1')
    A.i('v_add_u32 v82, s74, v82')
    A.i(f'v_xor_b32 v82, v82, v{vN}')
    A.i('v_lshlrev_b32 v82, 4, v82')
    A.i(f'v_and_b32 v83, 1, v{vQ}')
    A.i('v_lshl_add_u32 v82, v83, 3, v82')
    A.i(f'v_lshl_add_u32 v{vHW}, v80, 8, v82')
    A.i(f'v_add_u32 v{vHW}, {HB}, v{vHW}')
    A.i(f'v_lshrrev_b32 v82, 2, v{vN}')
    A.i(f'v_lshl_add_u32 v84, v{vQ}, 3, v82')
    A.i('v_lshl_add_u32 v82, v83, 2, v82')
    A.i('v_lshlrev_b32 v82, 1, v82')
    A.i(f'v_bfe_u32 v85, v{vN}, 1, 1')
    A.i('v_add_u32 v85, s74, v85')
    A.i('v_xor_b32 v82, v82, v85')
    A.i('v_lshlrev_b32 v82, 4, v82')
    A.i(f'v_and_b32 v85, 1, v{vN}')
    A.i('v_lshl_add_u32 v82, v85, 3, v82')
    A.i(f'v_lshl_add_u32 v{vTLO}, v84, 10, v82')
    A.i(f'v_add_u32 v{vTLO}, 256, v{vTLO}')
    A.i(f'v_add_u32 v{vTHI}, 0x10000, v{vTLO}')
    A.i(f'v_lshlrev_b32 v{v8Q}, 3, v{vQ}')
    A.i(f'v_lshl_add_u32 v{vPAY}, v80, 5, v{v8Q}')
    A.i(f'v_add_u32 v{vPAY}, {PT}, v{vPAY}')
    A.i(f's_lshr_b32 s74, s{sWV}, 1')
    A.i('s_lshl_b32 s75, s74, 2')
    A.i('s_and_b32 s74, s74, 1')
    A.i('s_lshl_b32 s74, s74, 3')
    A.i(f'v_cmp_gt_u32 vcc, 16, v{vLANE}')
    for i in range(4):
        A.i(f's_add_u32 s78, s75, {i}')
        A.i(f's_add_u32 s79, s74, {2*i}')
        A.i('v_mov_b32 v82, s79')
        A.i('v_mov_b32 v83, s78')
        A.i('v_cndmask_b32 v82, v82, v83, vcc')
        A.i(f'v_xor_b32 v82, v82, v{vLANE}')
        A.i(f'v_lshlrev_b32 v{vDMA+i}, 4, v82')
    A.i(f's_lshl_b32 s74, s{sWV}, 5')
    A.i(f'v_lshl_add_u32 v{vRO}, v{vN}, 10, v{v8Q}')
    A.i(f'v_add_u32 v{vRO}, s74, v{vRO}')
    A.i(f'v_lshlrev_b32 v{vPLK}, 2, v{vN}')
    A.i(f'v_add_u32 v{vPLK}, {PL}, v{vPLK}')
    A.i(f'v_and_b32 v{vU}, 3, v{vLANE}')
    A.i(f's_lshl_b32 s74, s{sWV}, 2')
    A.i(f'v_add_u32 v{vU}, s74, v{vU}')
    A.i(f'v_lshlrev_b32 v{vKTA}, 2, v{vU}')
    A.i(f'v_add_u32 v{vKTA}, {KT}, v{vKTA}')
    for k in range(4):
        A.i(f'v_mov_b32 v{84+k}, 0')
    A.i('v_lshlrev_b32 v82, 4, v0')
    A.i(f'v_add_u32 v82, {PT}, v82')
    A.i('ds_write_b128 v82, v[84:87]')
    A.i('ds_write_b128 v82, v[84:87] offset:8192')
    A.i('v_cmp_gt_u32 vcc, 64, v0')
    A.i('s_and_saveexec_b64 s[74:75], vcc')
    A.br('s_cbranch_execz K2_I1')
    A.i('ds_write_b128 v82, v[84:87] offset:16384')
    A.label('K2_I1')
    A.i('s_mov_b64 exec, -1')
    A.i('v_cmp_gt_u32 vcc, 81, v0')
    A.i('s_and_saveexec_b64 s[74:75], vcc')
    A.br('s_cbranch_execz K2_I2')
    A.i('v_mul_u32_u24 v82, 57, v0')
    A.i('v_lshrrev_b32 v82, 9, v82')
    A.i('v_mul_u32_u24 v83, 9, v82')
    A.i('v_sub_u32 v83, v0, v83')
    A.i('v_mov_b32 v89, 1')
    A.i('v_lshlrev_b32 v88, v83, v89')
    A.i('v_lshlrev_b32 v89, v82, v89')
    A.i('v_sub_u32 v88, v88, v89')
    A.i('v_max_i32 v88, 0, v88')
    A.i('s_mov_b32 s78, 0x3f80')
    A.i('s_mov_b32 s79, 0x3f800000')
    for p in range(4):
        A.i(f'v_bfe_i32 v89, v88, {2*p}, 1')
        A.i(f'v_bfe_i32 v90, v88, {2*p+1}, 1')
        A.i('v_and_b32 v89, s78, v89')
        A.i(f'v_and_or_b32 v{92+p}, v90, s79, v89')
    A.i('v_lshlrev_b32 v82, 4, v0')
    A.i(f'v_add_u32 v82, {LUT}, v82')
    A.i('ds_write_b128 v82, v[92:95]')
    A.label('K2_I2')
    A.i('s_mov_b64 exec, -1')
    assert all((57 * t) >> 9 == t // 9 for t in range(81))
    A.i('s_waitcnt lgkmcnt(0)')
    A.i(f's_lshl_b32 s{sF}, s76, 16')
    A.i(f's_and_b32 s{sF+1}, s76, s{sHI}')
    A.i(f's_lshl_b32 s{sF+2}, s77, 16')
    A.i(f's_and_b32 s{sF+3}, s77, s{sHI}')
    A.i(f's_waitcnt vmcnt({NW})')
    A.i(f'v_min_u32 v73, {CELL_CAP}, v64')
    A.i('v_lshrrev_b32 v74, 8, v0')
    A.i('v_mul_u32_u24 v74, 7, v74')
    A.i('v_sub_u32 v73, v73, v74')
    A.i('v_med3_i32 v73, v73, 0, 7')
    A.i(f'v_cmp_lt_u32 s[94:95], {CELL_CAP}, v64')
    A.label('K2_PASS')
    A.i('v_mov_b32 v84, 0')
    A.i('v_lshlrev_b32 v82, 2, v0')
    A.i(f'v_add_u32 v82, {CNT}, v82')
    A.i('v_cmp_gt_u32 vcc, 128, v0')
    A.i('s_and_saveexec_b64 s[74:75], vcc')
    A.br('s_cbranch_execz K2_I3')
    A.i('ds_write_b32 v82, v84')
    A.i(f'ds_write_b32 v82, v84 offset:{FLG-CNT}' if False else f'v_mov_b32 v83, {FLG}')
    A.i('ds_write_b32 v83, v84')
    A.i('ds_write_b32 v83, v84 offset:4')
    A.label('K2_I3')
    A.i('s_mov_b64 exec, -1')
    A.i('s_waitcnt lgkmcnt(0)')
    A.i('s_barrier')
    A.i('v_mov_b32 v74, 1')
    A.i('s_cmp_eq_u64 s[94:95], 0')
    A.br('s_cbranch_scc1 K2_NOFLAG')
    A.i(f'v_mov_b32 v83, {FLG}')
    A.i('ds_write_b32 v83, v74')
    A.label('K2_NOFLAG')
    for i in range(7):
        A.i(f'v_cmp_lt_u32 vcc, {i}, v73')
        A.i('s_and_b64 exec, exec, vcc')
        A.br('s_cbranch_execz K2_RANKED')
        A.i(f'v_lshrrev_b32 v{76+i}, 16, v{65+i}')
        A.i(f'v_subrev_u32 v{76+i}, s{sBASE}, v{76+i}')
        A.i(f'v_lshlrev_b32 v{76+i}, 2, v{76+i}')
        A.i(f'v_add_u32 v{76+i}, {CNT}, v{76+i}')
        A.i(f'ds_add_rtn_u32 v{84+i}, v{76+i}, v74')
    A.label('K2_RANKED')
    A.i('s_mov_b64 exec, -1')
    A.i('s_waitcnt lgkmcnt(0)')
    A.i('s_barrier')
    A.i(f'v_lshlrev_b32 v92, 3, v{vLANE}')
    A.i(f'v_add_u32 v92, {CNT}, v92')
    A.i('ds_read_b64 v[94:95], v92')
    A.i(f'v_mov_b32 v93, {FLG}')
    A.i('ds_read_b32 v93, v93')
    A.i('s_waitcnt lgkmcnt(0)')
    A.i('v_add_u32 v96, v94, v95')
    A.i('v_mov_b32 v97, v96')
    for sh in (1, 2, 4, 8):
        A.i(f'v_add_u32_dpp v97, v97, v97 row_shr:{sh} row_mask:0xf bank_mask:0xf')
    A.i('v_add_u32_dpp v97, v97, v97 row_bcast:15 row_mask:0xa bank_mask:0xf')
    A.i('v_add_u32_dpp v97, v97, v97 row_bcast:31 row_mask:0xc bank_mask:0xf')
    A.i(f'v_sub_u32 v{vPE}, v97, v96')
    A.i(f'v_add_u32 v{vPO}, v{vPE}, v94')
    A.i(f'v_readlane_b32 s{sTOT}, v97, 63')
    A.i('v_readfirstlane_b32 s74, v93')
    A.i(f'ds_write_b64 v92, v[{vPE}:{vPO}] offset:{PL-CNT}' if vPE % 2 == 0 else 'BAD')
    A.i(f's_cmp_gt_u32 s{sTOT}, {CAP}')
    A.i('s_cselect_b32 s75, 1, 0')
    A.i('s_or_b32 s74, s74, s75')
    A.i('s_cmp_lg_u32 s74, 0')
    A.br('s_cbranch_scc1 K2_SLOW')
    A.i('s_waitcnt lgkmcnt(0)')
    for i in range(7):
        A.i(f'v_cmp_lt_u32 vcc, {i}, v73')
        A.i('s_and_b64 exec, exec, vcc')
        A.br('s_cbranch_execz K2_PLACED')
        A.i(f'ds_read_b32 v92, v{76+i} offset:{PL-CNT}')
        A.i('s_waitcnt lgkmcnt(0)')
        A.i(f'v_add_u32 v92, v92, v{84+i}')
        A.i('v_lshlrev_b32 v92, 2, v92')
        A.i(f'v_add_u32 v92, {KT}, v92')
        A.i(f'ds_write_b32 v92, v{65+i}')
    A.label('K2_PLACED')
    A.i('s_mov_b64 exec, -1')
    A.i('s_waitcnt lgkmcnt(0)')
    A.i('s_barrier')
    A.i('v_lshlrev_b32 v64, 2, v0')
    A.i(f'v_add_u32 v64, {KT}, v64')
    A.i('ds_read_b32 v64, v64')
    A.i(f'v_cmp_gt_u32 s[94:95], s{sTOT}, v0')
    A.i('s_waitcnt lgkmcnt(0)')
    A.i('v_and_b32 v65, 0xffff, v64')
    A.i('v_lshrrev_b32 v66, 16, v64')
    A.i('v_mul_u32_u24 v67, 6, v65')
    A.i('v_mul_u32_u24 v68, 6, v66')
    A.i('v_and_b32 v67, -4, v67')
    A.i('v_and_b32 v68, -4, v68')
    A.i(f'v_mov_b32 v69, s{sOOB}')
    A.i('v_cndmask_b32 v67, v69, v67, s[94:95]')
    A.i('v_cndmask_b32 v68, v69, v68, s[94:95]')
    A.i(f'buffer_load_dwordx2 v[70:71], v67, s[{POS}:{POS+3}], 0 offen')
    A.i(f'buffer_load_dwordx2 v[72:73], v68, s[{POS}:{POS+3}], 0 offen')
    A.i(f's_mov_b32 s{sA}, 0')
    A.i(f's_mov_b32 s{sB}, 0')
    A.i(f's_mov_b32 s{sW0}, 0')
    A.i(f's_mov_b32 s{sEND}, 0')
    for k in range(3):
        gen_desc(A, k)
        issue_tile(A, k)
        for c in range(4):
            A.i(f'buffer_store_dword v69, v69, s[{OUT}:{OUT+3}], 0 offen')
    A.i('v_and_b32 v65, 1, v65')
    A.i('v_lshlrev_b32 v65, 4, v65')
    A.i('v_and_b32 v66, 1, v66')
    A.i('v_lshlrev_b32 v66, 4, v66')
    A.i('s_waitcnt vmcnt(36)')
    A.i('v_alignbit_b32 v70, v71, v70, v65')
    A.i('v_lshrrev_b32 v71, v65, v71')
    A.i('v_alignbit_b32 v72, v73, v72, v66')
    A.i('v_lshrrev_b32 v73, v66, v73')
    X, Y, Z = 74, 75, 76
    A.i(f'v_lshlrev_b32 v{X}, 16, v70')
    A.i('v_lshlrev_b32 v77, 16, v72')
    A.i(f'v_sub_f32 v{X}, v{X}, v77')
    A.i(f'v_and_b32 v{Y}, s{sHI}, v70')
    A.i(f'v_and_b32 v77, s{sHI}, v72')
    A.i(f'v_sub_f32 v{Y}, v{Y}, v77')
    A.i(f'v_lshlrev_b32 v{Z}, 16, v71')
    A.i('v_lshlrev_b32 v77, 16, v73')
    A.i(f'v_sub_f32 v{Z}, v{Z}, v77')
    bf16r2(A, X, Y, 77)
    bf16r1(A, Z)
    A.i(f'v_mul_f32 v78, v{X}, v{X}')
    A.i(f'v_mul_f32 v79, v{Y}, v{Y}')
    A.i(f'v_mul_f32 v80, v{Z}, v{Z}')
    bf16r2(A, 78, 79, 77)
    bf16r1(A, 80)
    A.i('v_add_f32 v78, v78, v79')
    A.i('v_add_f32 v78, v78, v80')
    bf16r1(A, 78)
    A.i('v_add_f32 v78, 0x322bcc77, v78')
    bf16r1(A, 78)
    A.i('v_sqrt_f32 v78, v78')
    bf16r1(A, 78)
    D, INV = 78, 79
    A.i(f'v_rcp_f32 v{INV}, v{D}')
    A.i(f'v_mul_f32 v{X}, v{X}, v{INV}')
    A.i(f'v_mul_f32 v{Y}, v{Y}, v{INV}')
    A.i(f'v_mul_f32 v{Z}, v{Z}, v{INV}')
    bf16r2(A, X, Y, 77)
    bf16r1(A, Z)
    G = 80
    for k in range(4):
        A.i(f'v_mul_f32 v{G+k}, s{sF+k}, v{D}')
    bf16r2(A, G, G + 1, 77)
    bf16r2(A, G + 2, G + 3, 77)
    for k in range(4):
        A.i(f'v_mul_f32 v{G+k}, 0.15915494, v{G+k}')
        A.i(f'v_fract_f32 v{G+k}, v{G+k}')
        A.i(f'v_sin_f32 v{G+k}, v{G+k}')
    bf16r2(A, G, G + 1, 77)
    bf16r2(A, G + 2, G + 3, 77)
    for k in range(4):
        A.i(f'v_mul_f32 v{G+k}, v{G+k}, v{INV}')
    bf16r2(A, G, G + 1, 77)
    bf16r2(A, G + 2, G + 3, 77)
    FC = 84
    A.i(f'v_mul_f32 v{FC}, 0x40490fdb, v{D}')
    bf16r1(A, FC)
    A.i(f'v_mul_f32 v{FC}, 0x3e4ccccd, v{FC}')
    bf16r1(A, FC)
    A.i(f'v_mul_f32 v{FC}, 0.15915494, v{FC}')
    A.i(f'v_fract_f32 v{FC}, v{FC}')
    A.i(f'v_cos_f32 v{FC}, v{FC}')
    bf16r1(A, FC)
    A.i(f'v_add_f32 v{FC}, 1.0, v{FC}')
    bf16r1(A, FC)
    A.i(f'v_mul_f32 v{FC}, 0.5, v{FC}')
    A.i(f'v_mul_f32 v85, 0, v{D}')
    A.i(f'v_cmp_gt_f32 vcc, 0x40a00000, v{D}')
    A.i(f'v_cndmask_b32 v{FC}, v85, v{FC}, vcc')
    for k in range(4):
        A.i(f'v_mul_f32 v{G+k}, v{G+k}, v{FC}')
    O = 88
    A.i(f'v_cvt_pk_bf16_f32 v{O}, v{G}, v{G+1}')
    A.i(f'v_cvt_pk_bf16_f32 v{O+1}, v{G+2}, v{G+3}')
    for c, R in enumerate((X, Y, Z)):
        for k in range(4):
            A.i(f'v_mul_f32 v{96+k}, v{G+k}, v{R}')
        A.i(f'v_cvt_pk_bf16_f32 v{O+2+2*c}, v96, v97')
        A.i(f'v_cvt_pk_bf16_f32 v{O+3+2*c}, v98, v99')
    A.i('v_lshlrev_b32 v64, 5, v0')
    A.i(f'v_add_u32 v64, {PT}, v64')
    A.i('s_mov_b64 exec, s[94:95]')
    A.i(f'ds_write_b128 v64, v[{O}:{O+3}]')
    A.i(f'ds_write_b128 v64, v[{O+4}:{O+7}] offset:16')
    A.i('s_mov_b64 exec, -1')
    A.i('s_waitcnt lgkmcnt(0)')
    A.label('K2_LOOP')
    for k in range(4):
        ki = (k + 3) % 4
        sa = vSLO if k < 2 else vSHI
        ta = vTLO if k < 2 else vTHI
        so = (k & 1) * SLOT
        A.c(f'---- slot {k} ----')
        A.i('s_waitcnt vmcnt(28)')
        A.i('s_barrier')
        A.i(f's_bitcmp1_b32 s{dFL+k}, 2')
        A.br('s_cbranch_scc0 K2_PASS_DONE')
        gen_desc(A, ki)
        issue_tile(A, ki)
        for T in range(2):
            for ks in range(4):
                A.i(f'ds_read_b128 {r4(FR + 16*T + 4*ks)}, v{sa+ks} offset:{so + T*4096}')
        A.i(f's_lshl_b32 s66, s{dA+k}, 2')
        A.i(f'v_add_u32 v{TMP}, s66, v{vPLK}')
        A.i(f'ds_read2_b32 {r2(TMP)}, v{TMP} offset0:0 offset1:1')
        A.i(f's_lshl_b32 s66, s{dW0+k}, 5')
        A.i(f'v_add_u32 v{TMP+2}, s66, v{vPAY}')
        A.i(f'ds_read_b64 {r2(PAYF)}, v{TMP+2}')
        A.i(f'ds_read_b64 {r2(PAYF+2)}, v{TMP+2} offset:128')
        skip = L('K2_NOINIT')
        A.i(f's_bitcmp1_b32 s{dFL+k}, 0')
        A.br(f's_cbranch_scc0 {skip}')
        for c in range(4):
            for h in range(2):
                rr = RESID + 8 * k + 2 * c + h
                A.i(f'v_lshlrev_b32 v{ACC+4*c+2*h}, 16, v{rr}')
                A.i(f'v_and_b32 v{ACC+4*c+2*h+1}, s{sHI}, v{rr}')
        A.label(skip)
        A.i('s_waitcnt lgkmcnt(3)')
        for T in range(2):
            for ks in range(4):
                c_in = '0' if ks == 0 else r4(PHI + 4 * T)
                A.i(f'v_mfma_f32_16x16x32_bf16 {r4(PHI+4*T)}, a[{aW1+4*ks}:{aW1+4*ks+3}], {r4(FR+16*T+4*ks)}, {c_in}')
        A.i('s_waitcnt lgkmcnt(0)')
        A.i(f'v_add_u32 v{TMP+2}, s{dW0+k}, v{v8Q}')
        A.i(f'v_sub_u32 v{TMP}, v{TMP}, v{TMP+2}')
        A.i(f'v_sub_u32 v{TMP+1}, v{TMP+1}, v{TMP+2}')
        A.i(f'v_med3_i32 v{TMP}, v{TMP}, 0, 8')
        A.i(f'v_med3_i32 v{TMP+1}, v{TMP+1}, 0, 8')
        A.i(f'v_mad_u32_u24 v{TMP}, v{TMP}, 9, v{TMP+1}')
        A.i(f'v_lshlrev_b32 v{TMP}, 4, v{TMP}')
        A.i(f'v_add_u32 v{TMP}, {LUT}, v{TMP}')
        A.i(f'ds_read_b128 {r4(SEL)}, v{TMP}')
        for c in range(3):
            for T in range(2):
                A.i(f'ds_read_b64_tr_b16 {r2(VV + 4*c + 2*T)}, v{ta} offset:{so + T*4096 + c*256}')
        for ty in range(2):
            for T in range(2):
                A.i(f'v_mfma_f32_16x16x16_bf16 {r4(WF+8*ty+4*T)}, {r2(PAYF+2*T)}, a[{aWR+2*ty}:{aWR+2*ty+1}], 0')
        for j in range(8):
            A.i(f'v_mul_f32 v{PHI+8+j}, s{sNL2E}, v{PHI+j}')
        for j in range(8):
            A.i(f'v_exp_f32 v{PHI+8+j}, v{PHI+8+j}')
        for j in range(8):
            A.i(f'v_add_f32 v{PHI+8+j}, 1.0, v{PHI+8+j}')
        for j in range(8):
            A.i(f'v_rcp_f32 v{PHI+8+j}, v{PHI+8+j}')
        for j in range(8):
            A.i(f'v_mul_f32 v{PHI+j}, v{PHI+j}, v{PHI+8+j}')
        for j in range(4):
            A.i(f'v_cvt_pk_bf16_f32 v{PHI+16+j}, v{PHI+2*j}, v{PHI+2*j+1}')
        A.i(f'ds_write_b64 v{vHW}, {r2(PHI+16)}')
        A.i(f'ds_write_b64 v{vHW}, {r2(PHI+18)} offset:1024')
        A.i('s_waitcnt lgkmcnt(0)')
        A.i('s_barrier')
        for T in range(2):
            for ks in range(4):
                A.i(f'ds_read_b128 {r4(FR + 16*T + 4*ks)}, v{vHR+ks} offset:{T*1024}')
        for T in range(2):
            A.i(f's_waitcnt lgkmcnt({4 - 4*T})')
            for p in range(3):
                for ks in range(4):
                    d = r4(PHI + 8 * p + 4 * T)
                    c_in = '0' if ks == 0 else d
                    w = aW2 + 16 * p + 4 * ks
                    A.i(f'v_mfma_f32_16x16x32_bf16 {d}, {r4(FR+16*T+4*ks)}, a[{w}:{w+3}], {c_in}')
        for c in range(3):
            for T in range(2):
                A.i(f'v_mfma_f32_16x16x16_bf16 {r4(FR+8*c+4*T)}, {r2(PAYF+2*T)}, a[{aWR+4+2*c}:{aWR+5+2*c}], 0')
        for j in range(8):
            A.i(f'v_mul_f32 v{WF+j}, v{PHI+j}, v{WF+j}')
        for j in range(8):
            A.i(f'v_mul_f32 v{WF+8+j}, v{PHI+8+j}, v{WF+8+j}')
        for j in range(4):
            A.i(f'v_cvt_pk_bf16_f32 v{PHI+j}, v{WF+2*j}, v{WF+2*j+1}')
        A.i(f'v_mfma_f32_16x16x32_bf16 {r4(ACC)}, {r4(PHI)}, {r4(SEL)}, {r4(ACC)}')
        for c in range(3):
            for j in range(8):
                A.i(f'v_mul_f32 v{FR+8*c+j}, v{PHI+16+j}, v{FR+8*c+j}')
            for j in range(8):
                src = VV + 4 * c + j // 2
                if j % 2 == 0:
                    A.i(f'v_lshlrev_b32 v{FR+24+j}, 16, v{src}')
                else:
                    A.i(f'v_and_b32 v{FR+24+j}, s{sHI}, v{src}')
            for j in range(8):
                A.i(f'v_fmac_f32 v{FR+8*c+j}, v{WF+8+j}, v{FR+24+j}')
            for j in range(4):
                A.i(f'v_cvt_pk_bf16_f32 v{PHI+4+4*c+j}, v{FR+8*c+2*j}, v{FR+8*c+2*j+1}')
            A.i(f'v_mfma_f32_16x16x32_bf16 {r4(ACC+4+4*c)}, {r4(PHI+4+4*c)}, {r4(SEL)}, {r4(ACC+4+4*c)}')
        A.i(f's_bitcmp1_b32 s{dFL+k}, 1')
        A.i(f's_cselect_b32 s66, s{dNN+k}, 0')
        A.i(f'v_cmp_gt_u32 vcc, s66, v{vN}')
        A.i(f'v_mov_b32 v{TMP+1}, s{sOOB}')
        A.i(f'v_cndmask_b32 v{TMP+1}, v{TMP+1}, v{vRO}, vcc')
        for c in range(4):
            A.i(f'v_cvt_pk_bf16_f32 v{WF+2*c}, v{ACC+4*c}, v{ACC+4*c+1}')
            A.i(f'v_cvt_pk_bf16_f32 v{WF+2*c+1}, v{ACC+4*c+2}, v{ACC+4*c+3}')
            A.i(f'buffer_store_dwordx2 {r2(WF+2*c)}, v{TMP+1}, s[{OUT}:{OUT+3}], s{dOFF+k} offen offset:{c*256}')
    A.br('s_branch K2_LOOP')
    A.label('K2_PASS_DONE')
    A.i('s_waitcnt vmcnt(0)')
    A.i('s_endpgm')
    A.label('K2_SLOW')
    A.i('s_waitcnt vmcnt(0)')
    A.label('K2_END')
    A.i('s_endpgm')


def build(path):
    A = Asm()
    A.raw(f'; @launch kernel=k1_kernel grid=({K1_GRID},1,1) block=({K1T},1,1) lds={K1_LDS}')
    A.raw(f'; @launch kernel=k2_kernel grid=({NB2},1,1) block=({K2T},1,1) lds={K2_LDS}')
    A.raw('.amdgcn_target "amdgcn-amd-amdhsa--gfx950"')
    A.raw('.text')
    gen_k1(A)
    gen_k2(A)
    A.raw('.section .rodata,"a"')
    A.raw(kd('k1_kernel', 64, 72))
    A.raw(kd('k2_kernel', NV + NA, 102, NV))
    open(path, 'w').write(A.text())
    print('nops added', A.nops_added, 'lines', len(A.lines))


if __name__ == '__main__':
    import sys
    build(sys.argv[1] if len(sys.argv) > 1 else 'v1.s')
```
